```python
import torch

def _softmax(x, axis=-1):
    return torch.softmax(x, dim=axis)
def _gelu(x):
    return torch.nn.functional.gelu(x, approximate="tanh")
def _silu(x):
    return torch.nn.functional.silu(x)
def _sigmoid(x):
    return torch.sigmoid(x)
def _layernorm(x, axis=-1, eps=1e-5):
    m = x.mean(dim=axis, keepdim=True)
    v = x.var(dim=axis, keepdim=True, unbiased=False)
    return (x - m) / torch.sqrt(v + eps)
def _scatter_add(tgt, idx, src, axis=0):
    return tgt.clone().index_add_(axis, idx, src)
def _segment_sum(src, seg, n):
    out = torch.zeros((n,) + src.shape[1:], dtype=src.dtype)
    return out.index_add_(0, seg, src)
def _pad(x, pw):
    flat = tuple(v for pair in reversed(pw) for v in pair)
    return torch.nn.functional.pad(x, flat)

kernel_name = 'concat_heads__gqa_block_cached__mha_block_cached__near_ridge'

def setup_inputs():

    _w = (lambda a: (lambda t: t.to(torch.bfloat16) if t.is_floating_point() else t)(torch.as_tensor(a)))
    def _A_setup():
        B, Sq, D = 8, 48, 1024
        Hq, Hkv, Sk, Dh = 32, 4, 2048, 128
        assert Hq % Hkv == 0, (Hq, Hkv)
        return {
            "x": _w((lambda *s: torch.randn(*s, dtype=torch.bfloat16) * 0.8)(B, Sq, D)),
            "k_cache": _w((lambda *s: torch.randn(*s, dtype=torch.bfloat16) * 0.8)(B, Hkv, Sk, Dh)),
            "v_cache": _w((lambda *s: torch.randn(*s, dtype=torch.bfloat16) * 0.05)(B, Hkv, Sk, Dh)),
            "wq": _w((lambda *s: torch.randn(*s, dtype=torch.bfloat16) * 0.8)(D, Hq * Dh) * (D ** -0.5)),
            "wo": _w((lambda *s: torch.randn(*s, dtype=torch.bfloat16) * 0.05)(Hq * Dh, D) * ((Hq * Dh) ** -0.5)),
        }
    _A_in = _A_setup()

    def _B_setup():
        B, Sq, D = 8, 48, 1024
        H, Sk, Dh = 32, 2048, 128
        return {
            "x": _w((lambda *s: torch.randn(*s, dtype=torch.bfloat16) * 0.8)(B, Sq, D)),
            "k_cache": _w((lambda *s: torch.randn(*s, dtype=torch.bfloat16) * 0.8)(B, H, Sk, Dh)),
            "v_cache": _w((lambda *s: torch.randn(*s, dtype=torch.bfloat16) * 0.05)(B, H, Sk, Dh)),
            "wq": _w((lambda *s: torch.randn(*s, dtype=torch.bfloat16) * 0.8)(D, H * Dh) * (D ** -0.5)),
            "wo": _w((lambda *s: torch.randn(*s, dtype=torch.bfloat16) * 0.05)(H * Dh, D) * ((H * Dh) ** -0.5)),
        }
    _B_in = _B_setup()

    return {
        "A_x": _A_in["x"],
        "A_k_cache": _A_in["k_cache"],
        "A_v_cache": _A_in["v_cache"],
        "A_wq": _A_in["wq"],
        "A_wo": _A_in["wo"],
        "B_x": _B_in["x"],
        "B_k_cache": _B_in["k_cache"],
        "B_v_cache": _B_in["v_cache"],
        "B_wq": _B_in["wq"],
        "B_wo": _B_in["wo"],
    }

def reference(A_x, A_k_cache, A_v_cache, A_wq, A_wo, B_x, B_k_cache, B_v_cache, B_wq, B_wo):
    def _A_ref(x, k_cache, v_cache, wq, wo):
        B, Sq, D = x.shape
        Hq, Dh = 32, 128
        Hkv = k_cache.shape[1]
        rep = Hq // Hkv
        q = (lambda x, *d: x.permute(*d))((x @ wq).reshape(B, Sq, Hq, Dh), 0, 2, 1, 3)
        k = (lambda x, n, axis: torch.repeat_interleave(x, n, dim=axis))(k_cache, rep, axis=1)
        v = (lambda x, n, axis: torch.repeat_interleave(x, n, dim=axis))(v_cache, rep, axis=1)
        scores = torch.einsum("bhqd,bhkd->bhqk", q, k) * (Dh ** -0.5)
        p = _softmax(scores, axis=-1)
        o = torch.einsum("bhqk,bhkd->bhqd", p, v)
        return (lambda x, *d: x.permute(*d))(o, 0, 2, 1, 3).reshape(B, Sq, Hq * Dh) @ wo

    def _B_ref(x, k_cache, v_cache, wq, wo):
        B, Sq, D = x.shape
        H, Dh = 32, 128
        q = (lambda x, *d: x.permute(*d))((x @ wq).reshape(B, Sq, H, Dh), 0, 2, 1, 3)
        scores = torch.einsum("bhqd,bhkd->bhqk", q, k_cache) * (Dh ** -0.5)
        p = _softmax(scores, axis=-1)
        o = torch.einsum("bhqk,bhkd->bhqd", p, v_cache)
        return (lambda x, *d: x.permute(*d))(o, 0, 2, 1, 3).reshape(B, Sq, H * Dh) @ wo

    a = _A_ref(A_x, A_k_cache, A_v_cache, A_wq, A_wo)
    b = _B_ref(B_x, B_k_cache, B_v_cache, B_wq, B_wo)
    return torch.concatenate([a, b], axis=-1)
```

```python
NAME = "concat_heads__gqa_block_cached__mha_block_cached__near_ridge"
HEADER = open("cdna_kernels/%s.s.ref" % NAME).read().split("; Override launch")[0]

class Asm:
    def __init__(self):
        self.lines = []
        self.uid = 0
    def __call__(self, s=""):
        for l in s.split("\n"):
            self.lines.append(l)
    def label(self, base="L"):
        self.uid += 1
        return "%s_%d" % (base, self.uid)
    def text(self):
        return "\n".join(self.lines) + "\n"

def kernel_begin(a, name):
    a(".globl %s" % name)
    a(".p2align 8")
    a(".type %s,@function" % name)
    a("%s:" % name)

def kernel_desc(name, vgpr, accum_offset=None, sgpr=102, wg_y=False):
    if accum_offset is None:
        accum_offset = min(256, (vgpr + 3) // 4 * 4)
    s = """.section .rodata,"a"
.p2align 6
.amdhsa_kernel %s
  .amdhsa_next_free_vgpr %d
  .amdhsa_next_free_sgpr %d
  .amdhsa_accum_offset %d
  .amdhsa_group_segment_fixed_size 0
  .amdhsa_kernarg_size 104
  .amdhsa_user_sgpr_count 2
  .amdhsa_user_sgpr_kernarg_segment_ptr 1
  .amdhsa_system_sgpr_workgroup_id_x 1
%s  .amdhsa_float_denorm_mode_32 3
.end_amdhsa_kernel
""" % (name, vgpr, sgpr, accum_offset, "  .amdhsa_system_sgpr_workgroup_id_y 1\n" if wg_y else "")
    return s

def file_text(launches, body, descs):
    s = HEADER
    if len(launches) == 1 and launches[0][0] == NAME + "_kernel":
        k, g, b, lds = launches[0]
        s += "; @launch grid=(%d,%d,%d) block=(%d,%d,%d) lds=%d\n" % (*g, *b, lds)
    else:
        for k, g, b, lds in launches:
            s += "; @launch kernel=%s grid=(%d,%d,%d) block=(%d,%d,%d) lds=%d\n" % (k, *g, *b, lds)
    s += '.amdgcn_target "amdgcn-amd-amdhsa--gfx950"\n.text\n'
    s += body
    s += "".join(descs)
    return s
```

```python
import re
REG = re.compile(r"^(-|\|)?(abs\()?([vas])(\d+|\[(\d+):(\d+)\])\)?\|?$")
def regs_of(tok):
    tok = tok.strip()
    if tok in ("vcc", "vcc_lo", "vcc_hi"): return {("s", "vcc")}
    if tok in ("exec", "exec_lo", "exec_hi"): return {("s", "exec")}
    if tok == "m0": return {("s", "m0")}
    m = REG.match(tok)
    if not m: return set()
    k = m.group(3)
    if m.group(5) is not None:
        return {(k, i) for i in range(int(m.group(5)), int(m.group(6)) + 1)}
    return {(k, int(m.group(4)))}
TRANS = ("v_exp_f32", "v_log_f32", "v_rcp_f32", "v_rsq_f32", "v_sqrt_f32", "v_sin_f32", "v_cos_f32")
class I:
    __slots__ = ("text", "op", "kind", "w", "r", "a", "b", "c", "passes", "ws", "label", "target", "lds", "wide_store", "data")
def parse(line):
    t = line.split(";")[0].strip()
    if not t or t.startswith("."): return None
    i = I(); i.text = line; i.label = None; i.target = None; i.w = set(); i.r = set(); i.kind = "other"; i.ws = 1
    i.a = i.b = i.c = set(); i.passes = 0; i.lds = False; i.wide_store = False; i.data = set()
    if t.endswith(":"):
        i.label = t[:-1]; i.op = "label"; i.ws = 0; i.kind = "label"; return i
    p = t.split(None, 1)
    op = p[0]; i.op = op
    ops = [x.strip() for x in p[1].split(",")] if len(p) > 1 else []
    mods = ""
    if ops:
        last = ops[-1].split()
        ops[-1] = last[0]; mods = " ".join(last[1:])
    R = [regs_of(x) for x in ops]
    U = lambda l: set().union(*l) if l else set()
    if op == "s_nop":
        i.ws = int(ops[0], 0) + 1; i.kind = "nop"
    elif op.startswith("v_mfma"):
        i.kind = "mfma"; i.w = R[0]; i.a, i.b, i.c = R[1], R[2], R[3]; i.r = U(R[1:])
        i.passes = 8 if "32x32x16" in op else 4
    elif op.startswith("v_cmpx"):
        i.kind = "valu"; i.w = R[0] | {("s", "exec")}; i.r = U(R[1:])
    elif op.startswith("v_cmp"):
        i.kind = "valu"; i.w = R[0]; i.r = U(R[1:])
    elif op.startswith("v_permlane"):
        i.kind = "valu"; i.w = R[0] | R[1]; i.r = R[0] | R[1]
    elif op.startswith(("v_add_co", "v_sub_co", "v_addc_co", "v_subb_co")):
        i.kind = "valu"; i.w = R[0] | R[1]; i.r = U(R[2:])
    elif op.startswith("v_"):
        i.kind = "valu"; i.w = R[0]; i.r = U(R[1:])
        if op.startswith(("v_fmac", "v_pk_fmac", "v_writelane", "v_dot2c")) or "dpp" in op or "row_" in mods or "quad_perm" in mods: i.r = i.r | R[0]
    elif op.startswith("ds_read") or op.startswith("ds_bpermute") or op.startswith("ds_swizzle"):
        i.kind = "ds"; i.w = R[0]; i.r = U(R[1:])
    elif op.startswith("ds_"):
        i.kind = "ds"; i.r = U(R)
    elif op.startswith("buffer_load") or op.startswith("global_load"):
        i.kind = "vmem"
        if " lds" in (" " + mods) or "_lds_" in op:
            i.lds = True; i.r = U(R) | {("s", "m0")}
        else:
            i.w = R[0]; i.r = U(R[1:])
    elif op.startswith(("buffer_store", "global_store", "buffer_atomic", "global_atomic")):
        i.kind = "vmem"; i.r = U(R)
        if "atomic" in op and "sc0" in mods: i.w = R[0]
        if op.endswith(("x3", "x4")):
            i.wide_store = True; i.data = R[0] if op.startswith("buffer") else R[1]
    elif op.startswith(("buffer_wbl2", "buffer_inv")):
        i.kind = "vmem"
    elif op.startswith(("s_cbranch", "s_branch")):
        i.kind = "branch"; i.target = ops[0]
    elif op.startswith(("s_waitcnt", "s_barrier", "s_endpgm", "s_sleep", "s_setprio", "s_cmp", "s_setpc", "s_bitcmp")):
        i.kind = "salu"; i.r = U(R)
    elif op.startswith("s_"):
        i.kind = "salu"; i.w = R[0] if R else set(); i.r = U(R[1:])
        if "saveexec" in op: i.w = i.w | {("s", "exec")}
    else:
        raise ValueError("unknown instr: " + line)
    return i
def isv(s): return {x for x in s if x[0] in "va"}
def iss(s): return {x for x in s if x[0] == "s"}
def need(p, c):
    n = 0
    if p.kind == "valu":
        vw = isv(p.w); sw = iss(p.w)
        if c.kind == "mfma":
            if vw & c.r: n = max(n, 2)
            if ("s", "exec") in sw: n = max(n, 4)
        if c.kind == "valu":
            if c.op.startswith("v_permlane") and vw & c.r: n = max(n, 2)
            if c.op.startswith(("v_readfirstlane", "v_readlane")) and vw & c.r: n = max(n, 1)
            if ("dpp" in c.op or "row_" in c.text or "quad_perm" in c.text) and vw & c.r: n = max(n, 2)
            if sw & c.r: n = max(n, 4 if c.op.startswith(("v_readlane", "v_writelane")) else 2)
            if p.op.startswith(TRANS) and not c.op.startswith(TRANS) and vw & c.r: n = max(n, 1)
            if p.op.startswith(TRANS) and vw & c.r: n = max(n, 1)
            if ("s", "exec") in sw and c.op.startswith(("v_readlane", "v_readfirstlane", "v_writelane", "v_permlane")): n = max(n, 4)
        if c.kind == "vmem" and sw & c.r: n = max(n, 5)
        if c.kind == "salu" and sw & c.r: n = max(n, 1)
    if p.kind == "salu" and ("s", "m0") in p.w and c.lds: n = max(n, 1)
    if p.wide_store and (p.data & c.w): n = max(n, 2)
    if p.kind == "mfma":
        big = p.passes == 8
        if c.kind == "mfma":
            if p.w & (c.a | c.b): n = max(n, 12 if big else 8)
            if p.w & c.c:
                if not (p.w == c.c and p.passes == c.passes): n = max(n, 10 if big else 6)
            elif p.w & c.w: n = max(n, 12 if big else 8)
        elif c.kind in ("valu", "ds", "vmem"):
            if p.w & (c.r | c.w): n = max(n, 12 if big else 8)
            if c.kind == "valu" and (p.c & c.w): n = max(n, 7 if big else 3)
    return n
MAXD = 13
def fix(lines, verbose=False):
    ins = [(l, parse(l)) for l in lines]
    total = 0
    for _ in range(6):
        code = [x for x in ins if x[1] is not None]
        idx_of_label = {}
        seq = [x[1] for x in ins]
        for k, i in enumerate(seq):
            if i is not None and i.label: idx_of_label[i.label] = k
        preds = {}
        for k, i in enumerate(seq):
            if i is not None and i.target in idx_of_label: preds.setdefault(idx_of_label[i.target], []).append(k)
        def required(k):
            c = seq[k]; best = 0
            stack = [(k - 1, 0)]; seen = set()
            while stack:
                j, d = stack.pop()
                while j >= 0 and d < MAXD:
                    if (j, d) in seen: break
                    seen.add((j, d))
                    p = seq[j]
                    if p is None: j -= 1; continue
                    if p.label:
                        for q in preds.get(j, []): stack.append((q, d))
                        jj = j - 1
                        while jj >= 0 and (seq[jj] is None): jj -= 1
                        if jj >= 0 and seq[jj].op in ("s_branch", "s_endpgm", "s_setpc_b64"): break
                        j -= 1; continue
                    nn = need(p, c) - d
                    if nn > best: best = nn
                    d += p.ws
                    j -= 1
            return best
        out = []; added = 0
        pending = []
        for k, (l, i) in enumerate(ins):
            if i is not None and i.kind in ("valu", "mfma", "ds", "vmem", "salu"):
                n = required(k)
                if n > 0:
                    pending.append((k, n))
        if not pending: break
        last = -1000; ins2 = []; pd = dict()
        for k, n in pending:
            if k - last > 40 or True:
                pd[k] = n; last = k
        take = {}; last = -1000
        for k, n in pending:
            if k - last > MAXD + 2: take[k] = n; last = k
        for k, (l, i) in enumerate(ins):
            if k in take:
                nl = "s_nop %d" % (take[k] - 1)
                if verbose: print("hazard: %s before [%s]" % (nl, l.strip()))
                ins2.append((nl, parse(nl))); added += 1
            ins2.append((l, i))
        ins = ins2; total += added
    else:
        return fix([l for l, _ in ins], verbose)
    return [l for l, _ in ins]
```

```python
import sys, struct
from asmlib import *
import hazard

def f2u(x): return struct.unpack("<I", struct.pack("<f", x))[0]
QSCALE = f2u(1.4426950408889634 / (128 ** 0.5))
REGION = 40960
QOFF = 34816
O_PART = 4 << 20
TS_OFF = 256 << 20

sPX_A, sPK_A, sPV_A, sPWQ_A, sPWO_A = 4, 6, 8, 10, 12
sPX_B, sPK_B, sPV_B, sPWQ_B, sPWO_B = 14, 16, 18, 20, 22
sPOUT, sPDBG, sPWS = 24, 26, 28
SRD_X, SRD_W, SRD_K, SRD_V, SRD_O, SRD_OUT = 32, 36, 40, 44, 48, 52
sW, sREG, sXCD, sJ, sB, sH, sROT, sROT2 = 56, 57, 58, 59, 60, 61, 62, 63
sT0, sT1, sT2, sT3 = 64, 65, 66, 67
sTHR, sFLOOR, sN, sOFFA, sOFFB, sIT = 68, 69, 70, 71, 72, 73
sPART, sNB = 74, 75
sTS = 80
def srd(n): return "s[%d:%d]" % (n, n + 3)
def vr(n, c=1): return "v%d" % n if c == 1 else "v[%d:%d]" % (n, n + c - 1)
def ar(n, c=1): return "a%d" % n if c == 1 else "a[%d:%d]" % (n, n + c - 1)

vL = 1
vKD, vVD, vKR, vVR = 2, 6, 10, 18
vLS, vMX = 22, 25
vT = 26
vK, vV, vS, vP, vC, vQ2 = 32, 64, 96, 128, 144, 192
vXD, vWD, vWR = 224, 228, 232
vT2 = 240
vXF = 96
aQ = 192

class Gen:
    def __init__(self, opt):
        self.a = Asm(); self.opt = opt
        self.vm = []; self.lg = []
        self.nt = " nt" if opt.get("nt", 1) else ""
        self.ntx = " nt" if opt.get("ntx", 0) else ""
        self.G = opt.get("G", 4096)
        self.rare = []
        self.tsn = 0
    def vmop(self, s, tag): self.a(s); self.vm.append(tag)
    def lgop(self, s, tag): self.a(s); self.lg.append(tag)
    def wvm(self, tag):
        if tag not in self.vm: return None
        k = len(self.vm) - 1 - self.vm[::-1].index(tag)
        n = len(self.vm) - 1 - k; self.vm = self.vm[k + 1:]
        assert n <= 63
        self.a("s_waitcnt vmcnt(%d)" % n)
    def wlg(self, tag):
        if tag not in self.lg: return None
        k = len(self.lg) - 1 - self.lg[::-1].index(tag)
        n = len(self.lg) - 1 - k
        if n > 15:
            k += n - 15; n = 15
        self.lg = self.lg[k + 1:]
        self.a("s_waitcnt lgkmcnt(%d)" % n)
    def wvm0(self): self.a("s_waitcnt vmcnt(0)"); self.vm = []
    def wlg0(self): self.a("s_waitcnt lgkmcnt(0)"); self.lg = []
    def ts(self, k):
        if self.opt.get("ts"):
            self.a("s_memrealtime s[%d:%d]" % (sTS + 2 * k, sTS + 2 * k + 1))
            self.wlg0()
    def ts_store(self, base=0):
        if not self.opt.get("ts"): return
        a = self.a
        self.ts(1)
        a("s_lshl_b32 s%d, s2, 2" % sT0); a("s_add_u32 s%d, s%d, s%d" % (sT0, sT0, sW)); a("s_add_u32 s%d, s%d, %d" % (sT0, sT0, base))
        a("s_lshl_b32 s%d, s%d, 6" % (sT0, sT0)); a("s_add_u32 s%d, s%d, %d" % (sT0, sT0, TS_OFF))
        a("s_add_u32 s%d, s%d, s%d" % (sT2, sPWS, sT0)); a("s_addc_u32 s%d, s%d, 0" % (sT3, sPWS + 1))
        for k in range(16): a("v_mov_b32 v%d, s%d" % (32 + k, sTS + k))
        a("v_mov_b32 v31, 0")
        a("v_cmp_eq_u32 vcc, 0, v%d" % vL); a("s_and_saveexec_b64 s[98:99], vcc")
        for k in range(4): a("global_store_dwordx4 v31, v[%d:%d], s[%d:%d] offset:%d" % (32 + 4 * k, 35 + 4 * k, sT2, sT3, 16 * k))
        a("s_mov_b64 exec, s[98:99]")
    def mksrd(self, S, ptr, off_sreg, nrec):
        a = self.a
        if off_sreg is None:
            a("s_mov_b32 s%d, s%d" % (S, ptr)); a("s_mov_b32 s%d, s%d" % (S + 1, ptr + 1))
        else:
            a("s_add_u32 s%d, s%d, s%d" % (S, ptr, off_sreg)); a("s_addc_u32 s%d, s%d, 0" % (S + 1, ptr + 1))
        if isinstance(nrec, int): a("s_mov_b32 s%d, %d" % (S + 2, nrec))
        else: a("s_sub_u32 s%d, %d, s%d" % (S + 2, nrec[0], off_sreg))
        a("s_mov_b32 s%d, 0x20000" % (S + 3))

    def entry(self, endlabel):
        a = self.a
        a("s_cmp_ge_u32 s2, 256"); a("s_cbranch_scc1 %s" % endlabel)
        if self.opt.get("ts"):
            for k in range(16): a("s_mov_b32 s%d, 0" % (sTS + k))
            a("s_memrealtime s[%d:%d]" % (sTS, sTS + 1))
        a("s_load_dwordx16 s[4:19], s[0:1], 0")
        a("s_load_dwordx8 s[20:27], s[0:1], 64")
        a("s_load_dwordx2 s[28:29], s[0:1], 96")
        a("v_lshrrev_b32 v%d, 6, v0" % vT)
        a("v_and_b32 v%d, 63, v0" % vL)
        a("v_readfirstlane_b32 s%d, v%d" % (sW, vT))
        a("s_and_b32 s%d, s2, 7" % sXCD)
        a("s_lshr_b32 s%d, s2, 3" % sJ)
        a("s_mul_i32 s%d, s%d, %d" % (sREG, sW, REGION))

    def qproj_addrs(self):
        a = self.a
        t0, t1, t2, t3 = vT, vT + 1, vT + 2, vT + 3
        a("v_lshrrev_b32 v%d, 4, v%d" % (t0, vL))
        a("v_and_b32 v%d, 15, v%d" % (t1, vL))
        for j in range(4):
            a("v_add_u32 v%d, %d, v%d" % (t2, 4 * j, t0))
            a("v_xor_b32 v%d, v%d, v%d" % (t2, t2, t1))
            a("v_lshlrev_b32 v%d, 4, v%d" % (t2, t2))
            a("v_lshl_add_u32 v%d, v%d, 11, v%d" % (t2, t0, t2))
            a("v_add_u32 v%d, %d, v%d" % (vXD + j, j * (4 * 2048 - 1024), t2))
            a("v_or_b32 v%d, %d, v%d" % (t2, ((j >> 1) & 1) << 2, t0))
            a("v_lshlrev_b32 v%d, 1, v%d" % (t2, t2))
            a("v_xor_b32 v%d, v%d, v%d" % (t2, t2, t1))
            a("v_lshlrev_b32 v%d, 4, v%d" % (t2, t2))
            a("v_lshl_add_u32 v%d, v%d, 13, v%d" % (t2, t0, t2))
            a("v_add_u32 v%d, %d, v%d" % (vWD + j, j * (4 * 8192 - 1024), t2))

    def qproj_addrs2(self):
        a = self.a
        t0, t1, t2, t3, t4 = vT, vT + 1, vT + 2, vT + 3, vT + 4
        a("v_lshrrev_b32 v%d, 4, v%d" % (t0, vL))
        a("v_bfe_u32 v%d, v%d, 2, 2" % (t1, vL))
        a("v_and_b32 v%d, 1, v%d" % (t2, t0))
        a("v_lshl_or_b32 v%d, v%d, 2, v%d" % (t2, t2, t1))
        a("v_lshl_add_u32 v%d, v%d, 3, v%d" % (t3, t0, t1))
        a("v_lshlrev_b32 v%d, 8, v%d" % (t3, t3))
        a("v_and_b32 v%d, 3, v%d" % (t4, vL))
        a("v_lshl_add_u32 v%d, v%d, 3, v%d" % (t3, t4, t3))
        a("v_add_u32 v%d, s%d, v%d" % (t3, sREG, t3))
        a("s_lshl_b32 s%d, s%d, 1" % (sT0, sW))
        for d in range(8):
            a("s_add_u32 s%d, s%d, %d" % (sT1, sT0, d)); a("s_and_b32 s%d, s%d, 7" % (sT1, sT1))
            a("v_xor_b32 v%d, s%d, v%d" % (t4, sT1, t2))
            a("v_lshl_add_u32 v%d, v%d, 5, v%d" % (vWR + d, t4, t3))
        a("v_and_b32 v%d, 15, v%d" % (t1, vL))
        a("v_xor_b32 v%d, v%d, v%d" % (t2, t0, t1))
        a("v_lshlrev_b32 v%d, 4, v%d" % (t2, t2))
        a("v_lshl_add_u32 v%d, v%d, 8, v%d" % (vT2, t1, t2))

    def attn_addrs(self):
        a = self.a; G = self.G
        t0, t1, t2, t3, t4 = vT, vT + 1, vT + 2, vT + 3, vT + 4
        a("v_lshrrev_b32 v%d, 4, v%d" % (t0, vL))
        a("v_and_b32 v%d, 15, v%d" % (t1, vL))
        a("s_mul_i32 s%d, s%d, %d" % (sT0, sW, 1024 if G == 4096 else 8192))
        a("v_lshlrev_b32 v%d, 8, v%d" % (t3, t0))
        a("v_add_u32 v%d, s%d, v%d" % (t3, sT0, t3))
        a("v_lshlrev_b32 v%d, 2, v%d" % (t4, t0))
        a("v_xor_b32 v%d, v%d, v%d" % (t4, t4, t1))
        a("v_lshl_add_u32 v%d, v%d, 4, v%d" % (t4, t4, t3))
        for j in range(4):
            a("v_add_u32 v%d, %d, v%d" % (t2, 4 * j, t0))
            a("v_xor_b32 v%d, v%d, v%d" % (t2, t2, t1))
            a("v_lshl_add_u32 v%d, v%d, 4, v%d" % (t2, t2, t3))
            a("v_add_u32 v%d, %d, v%d" % (vKD + j, j * (G - 1024), t2))
            a("v_add_u32 v%d, %d, v%d" % (vVD + j, j * (G - 1024), t4))
        a("v_and_b32 v%d, 31, v%d" % (t2, vL))
        a("v_lshlrev_b32 v%d, 8, v%d" % (t2, t2))
        a("v_add_u32 v%d, s%d, v%d" % (t2, sREG, t2))
        a("v_lshrrev_b32 v%d, 5, v%d" % (t3, vL))
        a("v_xor_b32 v%d, v%d, v%d" % (t4, t3, t1))
        for s in range(8):
            a("v_xor_b32 v%d, %d, v%d" % (vKR + s, 2 * s, t4))
            a("v_lshl_add_u32 v%d, v%d, 4, v%d" % (vKR + s, vKR + s, t2))
        a("v_bfe_u32 v%d, v%d, 2, 2" % (t1, vL))
        a("v_lshl_add_u32 v%d, v%d, 2, v%d" % (t2, t3, t1))
        a("v_lshlrev_b32 v%d, 8, v%d" % (t2, t2))
        a("v_and_b32 v%d, 1, v%d" % (t4, t0))
        a("v_lshl_add_u32 v%d, v%d, 5, v%d" % (t2, t4, t2))
        a("v_and_b32 v%d, 3, v%d" % (t4, vL))
        a("v_lshl_add_u32 v%d, v%d, 3, v%d" % (t2, t4, t2))
        a("v_add_u32 v%d, s%d, v%d" % (t2, sREG, t2))
        for d in range(4):
            a("s_add_u32 s%d, s%d, %d" % (sT1, sW, d)); a("s_and_b32 s%d, s%d, 3" % (sT1, sT1))
            a("v_xor_b32 v%d, s%d, v%d" % (t4, sT1, t1))
            a("v_lshl_add_u32 v%d, v%d, 6, v%d" % (vVR + d, t4, t2))

    def dma_group(self, S, voff, soff, half_step, ldsoff, tag, flag, n=8):
        items = []
        for c in range(n // 4):
            def pre(c=c):
                self.a("s_add_u32 m0, s%d, %d" % (sREG, ldsoff + c * 4096))
                if c: self.a("s_add_u32 s%d, s%d, %d" % (sT3, soff, c * half_step))
            for j in range(4):
                def f(c=c, j=j, pre=pre):
                    if j == 0: pre()
                    self.vmop("buffer_load_dwordx4 v%d, %s, s%d offen offset:%d%s lds" % (voff + j, srd(S), sT3 if c else soff, j * 1024, flag), tag)
                items.append(f)
        return items
    def kv_off_next(self, dst, rot):
        a = self.a
        if rot:
            a("s_add_u32 s%d, s%d, s%d" % (sT0, sN, sROT2)); a("s_and_b32 s%d, s%d, 3" % (sT0, sT0))
            a("s_andn2_b32 s%d, s%d, 3" % (dst, sN)); a("s_or_b32 s%d, s%d, s%d" % (dst, dst, sT0))
            a("s_lshl_b32 s%d, s%d, 15" % (dst, dst))
        else:
            a("s_lshl_b32 s%d, s%d, 15" % (dst, sN))
        a("s_add_u32 s%d, s%d, 1" % (sN, sN))

    def qproj(self, NH, NQT):
        a = self.a
        NB = 8 * NH
        slots = [i % 5 for i in range(NB)]
        if NH == 2: slots[15] = 2
        rot = NQT == 3 and self.opt.get("rotA", 1)
        for hf in range(2):
            a("s_lshl_b32 s%d, s%d, 9" % (sT1, sW))
            if hf: a("s_add_u32 s%d, s%d, 256" % (sT1, sT1))
            for f in self.dma_group(SRD_X, vXD, sT1, 16 * 2048, 16384 + hf * 12288, "x", self.ntx, n=12): f()
        def wgroup(i):
            hd, ks = divmod(i, 8)
            its = self.dma_group(SRD_W, vWD, sT2, 16 * 8192, slots[i] * 8192, "w%d" % i, self.nt)
            def first(f0=its[0]):
                a("s_add_u32 s%d, s%d, %d" % (sT2, sROT, ks)); a("s_and_b32 s%d, s%d, 7" % (sT2, sT2))
                a("s_lshl3_add_u32 s%d, s%d, s%d" % (sT2, sW, sT2))
                a("s_lshl_b32 s%d, s%d, 18" % (sT2, sT2))
                if hd: a("s_add_u32 s%d, s%d, 256" % (sT2, sT2))
                f0()
            return [first] + its[1:]
        def kvgroup(which):
            G = self.G
            if which == 0:
                its = self.dma_group(SRD_K, vKD, sOFFA, 4 * G, 0, "K0", self.nt)
                def first(f0=its[0]):
                    a("s_mov_b32 s%d, 0" % sN); self.kv_off_next(sOFFA, rot); f0()
                return [first] + its[1:]
            if NQT == 3:
                return self.dma_group(SRD_V, vVD, sOFFA, 4 * G, 8192, "V0", self.nt)
            its = self.dma_group(SRD_K, vKD, sOFFB, 4 * G, 8192, "K1", self.nt)
            def first(f0=its[0]):
                self.kv_off_next(sOFFB, rot); f0()
            return [first] + its[1:]
        for i in (0, 1):
            for f in wgroup(i): f()
        self.qproj_addrs2()
        self.wvm("x")
        for ks in range(8):
            a("s_add_u32 s%d, s%d, %d" % (sT0, sROT, ks))
            a("s_and_b32 s%d, s%d, 3" % (sT1, sT0)); a("s_lshl_b32 s%d, s%d, 6" % (sT1, sT1))
            a("s_bfe_u32 s%d, s%d, 0x10002" % (sT0, sT0)); a("s_mul_i32 s%d, s%d, 12288" % (sT0, sT0))
            a("s_add_u32 s%d, s%d, s%d" % (sT0, sT0, sREG))
            t = vT2 + 1 + (ks & 1)
            a("v_xor_b32 v%d, s%d, v%d" % (t, sT1, vT2)); a("v_add_u32 v%d, s%d, v%d" % (t, sT0, t))
            for qt in range(3):
                self.lgop("ds_read_b128 %s, v%d offset:%d" % (vr(vXF + (ks * 3 + qt) * 4, 4), t, 16384 + qt * 4096), "xf")
        self.wlg0()
        for i in (2, 3, 4):
            for f in wgroup(i): f()
        pend = []
        last_in_slot = {slots[i]: i for i in range(5)}
        for i in range(5, NB):
            pend.append((wgroup(i), last_in_slot[slots[i]])); last_in_slot[slots[i]] = i
        pend.append((kvgroup(0), last_in_slot[0])); pend.append((kvgroup(1), last_in_slot[1]))
        def mf(i):
            hd, ks = divmod(i, 8); buf = vK + 32 * (i & 1); out = []
            for d in range(8):
                for qt in range(3):
                    acc = ar(hd * 96 + (d * 3 + qt) * 4, 4)
                    out.append("v_mfma_f32_16x16x32_bf16 %s, %s, %s, %s" % (acc, vr(buf + 4 * d, 4), vr(vXF + (ks * 3 + qt) * 4, 4), acc if ks else "0"))
            return out
        for i in range(NB + 1):
            m = mf(i - 1) if i else []
            d = []
            while pend and pend[0][1] <= i - 1: d += pend.pop(0)[0]
            k = 0
            for f in d:
                f()
                if k < 8 and k < len(m): a(m[k]); k += 1
            while k < 8 and k < len(m): a(m[k]); k += 1
            if i < NB:
                self.wvm("w%d" % i)
                buf = vK + 32 * (i & 1)
                for dd in range(8):
                    for u in range(2):
                        self.lgop("ds_read_b64_tr_b16 %s, v%d offset:%d" % (vr(buf + 4 * dd + 2 * u, 2), vWR + dd, slots[i] * 8192 + u * 1024), "wf")
                        if k < len(m): a(m[k]); k += 1
            while k < len(m): a(m[k]); k += 1
            if i < NB: self.wlg0()
        assert not pend
        tW, tR, tQ = vT2, vT2 + 1, vT2 + 4
        a("v_lshlrev_b32 v%d, 4, v%d" % (vT, vL))
        a("v_add_u32 v%d, s%d, v%d" % (tW, sREG, vT))
        for p in (1, 2, 3):
            a("s_sub_u32 s%d, s%d, %d" % (sT0, sW, p)); a("s_and_b32 s%d, s%d, 3" % (sT0, sT0)); a("s_mul_i32 s%d, s%d, %d" % (sT0, sT0, REGION))
            a("v_add_u32 v%d, s%d, v%d" % (tR + p - 1, sT0, vT))
        a("v_and_b32 v%d, 15, v%d" % (vT, vL)); a("v_lshlrev_b32 v%d, 6, v%d" % (vT + 1, vT))
        a("v_bfe_u32 v%d, v%d, 4, 1" % (vT + 2, vL)); a("v_lshl_add_u32 v%d, v%d, 3, v%d" % (vT + 1, vT + 2, vT + 1))
        a("s_add_u32 s%d, s%d, %d" % (sT0, sREG, QOFF)); a("v_add_u32 v%d, s%d, v%d" % (vT + 1, sT0, vT + 1))
        a("v_lshrrev_b32 v%d, 2, v%d" % (vT, vT)); a("v_lshrrev_b32 v%d, 5, v%d" % (vT + 2, vL)); a("v_xor_b32 v%d, v%d, v%d" % (vT, vT, vT + 2))
        a("v_lshl_add_u32 v%d, v%d, 4, v%d" % (tQ, vT, vT + 1))
        a("v_xor_b32 v%d, 2, v%d" % (vT, vT)); a("v_lshl_add_u32 v%d, v%d, 4, v%d" % (tQ + 1, vT, vT + 1))
        a("s_mov_b32 s%d, 0x%x" % (sT0, QSCALE)); a("s_mov_b32 s%d, 0x%x" % (sT1, QSCALE))
        R = vXF
        for hd in range(NH):
            if hd: a("s_barrier")
            for p in (1, 2, 3):
                for t in range(6):
                    self.lgop("ds_write_b128 v%d, %s offset:%d" % (tW, ar(hd * 96 + (p * 6 + t) * 4, 4), 16384 + ((p - 1) * 6 + t) * 1024), "pw")
            for r in range(24): a("v_accvgpr_read_b32 v%d, a%d" % (R + 72 + r, hd * 96 + r))
            self.wlg0(); a("s_barrier")
            for t in range(6):
                for p in (1, 2, 3):
                    self.lgop("ds_read_b128 %s, v%d offset:%d" % (vr(R + (t * 3 + p - 1) * 4, 4), tR + p - 1, 16384 + ((p - 1) * 6 + t) * 1024), "pr%d" % t)
            for t in range(6):
                self.wlg("pr%d" % t)
                o = R + 72 + 4 * t
                for p in range(3):
                    for h2 in range(2):
                        a("v_pk_add_f32 %s, %s, %s" % (vr(o + 2 * h2, 2), vr(o + 2 * h2, 2), vr(R + (t * 3 + p) * 4 + 2 * h2, 2)))
                for h2 in range(2): a("v_pk_mul_f32 %s, %s, s[%d:%d]" % (vr(o + 2 * h2, 2), vr(o + 2 * h2, 2), sT0, sT1))
                for h2 in range(2): a("v_cvt_pk_bf16_f32 v%d, v%d, v%d" % (o + h2, o + 2 * h2, o + 2 * h2 + 1))
                dtl, qt = divmod(t, 3)
                self.lgop("ds_write_b64 v%d, %s offset:%d" % (tQ + dtl, vr(o, 2), (hd * 48 + qt * 16) * 64), "qw")
        for r in range(16): a("v_mov_b32 v%d, 0" % (vP + r))
        for r in range(3): a("v_mov_b32 v%d, 0" % (vLS + r))
        if NH == 1:
            self.lgop("ds_write_b128 v%d, %s offset:%d" % (tW, vr(vP, 4), QOFF + 48 * 64), "qw")
        tA = vT2 + 8
        a("v_and_b32 v%d, 31, v%d" % (vT, vL)); a("v_lshlrev_b32 v%d, 6, v%d" % (vT + 1, vT)); a("v_add_u32 v%d, %d, v%d" % (vT + 1, QOFF, vT + 1))
        a("v_bfe_u32 v%d, v%d, 2, 2" % (vT, vL)); a("v_lshrrev_b32 v%d, 5, v%d" % (vT + 2, vL)); a("v_xor_b32 v%d, v%d, v%d" % (vT, vT, vT + 2))
        a("v_lshl_add_u32 v%d, v%d, 4, v%d" % (tA, vT, vT + 1))
        a("v_xor_b32 v%d, 2, v%d" % (vT, vT)); a("v_lshl_add_u32 v%d, v%d, 4, v%d" % (tA + 1, vT, vT + 1))
        a("v_add_u32 v%d, %d, v%d" % (tA + 2, 2 * REGION, tA)); a("v_add_u32 v%d, %d, v%d" % (tA + 3, 2 * REGION, tA + 1))
        self.wlg0(); a("s_barrier")
        G = self.G
        if NQT == 3:
            self.kv_off_next(sOFFB, rot)
            d = self.dma_group(SRD_K, vKD, sOFFB, 4 * G, 16384, "K1", self.nt) + self.dma_group(SRD_V, vVD, sOFFB, 4 * G, 24576, "V1", self.nt)
        else:
            d = self.dma_group(SRD_V, vVD, sOFFA, 4 * G, 16384, "V0", self.nt)
        z = ["v_mfma_f32_32x32x16_bf16 %s, %s, %s, 0" % (ar(16 * k, 16), vr(vP, 4), vr(vP, 4)) for k in range(4 * NQT)]
        z = ["v_mfma_f32_32x32x16_bf16 %s, %s, %s, 0" % (vr(vC + 16 * k, 16), vr(vP, 4), vr(vP, 4)) for k in range(NQT)] + z
        for T in range(NQT):
            for s in range(8):
                dst = ar(aQ + T * 32 + s * 4, 4) if T < 2 else vr(vQ2 + s * 4, 4)
                wp = s >> 1
                self.lgop("ds_read_b128 %s, v%d offset:%d" % (dst, tA + (wp >> 1) * 2 + (s & 1), (wp & 1) * REGION + T * 2048), "q")
                if z and s & 1: a(z.pop(0))
        for f in d:
            f()
            if z: a(z.pop(0))
        for m in z: a(m)

    def qreg(self, T, s): return ar(aQ + T * 32 + s * 4, 4) if T < 2 else vr(vQ2 + s * 4, 4)
    def qk(self, T, sb):
        D = vr(vS + 16 * sb, 16)
        return ["v_mfma_f32_32x32x16_bf16 %s, %s, %s, %s" % (D, vr(vK + 4 * s, 4), self.qreg(T, s), D if s else vr(vC + 16 * T, 16)) for s in range(8)]
    def pv(self, T, pb):
        out = []
        for t in range(2):
            for d in range(4):
                O = ar(T * 64 + d * 16, 16)
                out.append("v_mfma_f32_32x32x16_bf16 %s, %s, %s, %s" % (O, vr(vV + (t * 4 + d) * 4, 4), vr(vP + 8 * pb + 4 * t, 4), O))
        return out
    def maxtree(self, sb):
        S = vS + 16 * sb
        out = [("v_max3_f32 v%d, v%d, v%d, v%d" % (vMX, S, S + 1, S + 2), 5)]
        for k in range(6): out.append(("v_max3_f32 v%d, v%d, v%d, v%d" % (vMX, vMX, S + 3 + 2 * k, S + 4 + 2 * k), 5))
        out.append(("v_max_f32 v%d, v%d, v%d" % (vMX, vMX, S + 15), 4))
        out.append(("v_cmp_lt_f32 vcc, s%d, v%d" % (sTHR, vMX), 4))
        return out
    def smax(self, T, sb):
        S = vS + 16 * sb; P = vP + 8 * sb; out = []
        for r in range(17):
            if r < 16: out.append(("v_exp_f32 v%d, v%d" % (S + r, S + r), 8))
            if r >= 1:
                k = r - 1
                if r == 16: out.append(("v_cvt_pk_bf16_f32 v%d, v%d, v%d" % (P + 6, S + 12, S + 13), 5))
                out.append(("v_add_f32 v%d, v%d, v%d" % (vLS + T, vLS + T, S + k), 4))
                if k & 1 and k != 13: out.append(("v_cvt_pk_bf16_f32 v%d, v%d, v%d" % (P + k // 2, S + k - 1, S + k), 5))
        return out
    def kreads(self, slot, tag):
        return [lambda s=s: self.lgop("ds_read_b128 %s, v%d offset:%d" % (vr(vK + 4 * s, 4), vKR + s, slot * 8192), "%s_%d" % (tag, s)) for s in range(8)]
    def vreads(self, slot, tag):
        out = []
        for t in range(2):
            for d in range(4):
                for u in range(2):
                    out.append(lambda t=t, d=d, u=u: self.lgop("ds_read_b64_tr_b16 %s, v%d offset:%d" % (vr(vV + (t * 4 + d) * 4 + 2 * u, 2), vVR + d, slot * 8192 + (16 * t + 8 * u) * 256), "%s_%d" % (tag, t * 4 + d)))
        return out
    def rare_block(self, lbl, ret, T, sb):
        a = self.a; S = vS + 16 * sb; C = vC + 16 * T
        a(lbl + ":")
        a("v_mov_b32 v%d, v%d" % (vT, vMX))
        a("v_permlane32_swap_b32 v%d, v%d" % (vT, vMX))
        a("v_max_f32 v%d, v%d, v%d" % (vT, vT, vMX))
        a("v_max_f32 v%d, s%d, v%d" % (vT, sFLOOR, vT))
        for r in range(16): a("v_sub_f32 v%d, v%d, v%d" % (S + r, S + r, vT))
        for r in range(16): a("v_sub_f32 v%d, v%d, v%d" % (C + r, C + r, vT))
        a("s_cmp_lg_u32 s%d, 0" % sFLOOR); a("s_cbranch_scc1 %s" % ret)
        a("s_branch %s_b" % lbl)
    def rare_block2(self, lbl, ret, T, sb):
        a = self.a
        a(lbl + "_b:")
        a("v_sub_f32 v%d, 0, v%d" % (vT, vT)); a("v_exp_f32 v%d, v%d" % (vT, vT))
        a("s_nop 15")
        a("v_mul_f32 v%d, v%d, v%d" % (vLS + T, vLS + T, vT))
        for r in range(64):
            t = vT + 1 + (r & 3)
            a("v_accvgpr_read_b32 v%d, a%d" % (t, T * 64 + r)); a("v_mul_f32 v%d, v%d, v%d" % (t, t, vT)); a("v_accvgpr_write_b32 a%d, v%d" % (T * 64 + r, t))
        a("s_branch %s" % ret)
    def flush_rare(self):
        for r in self.rare: self.rare_block(*r)
        for r in self.rare: self.rare_block2(*r)
        self.rare = []

    def attn(self, NQT, name):
        a = self.a; G = self.G
        rot = NQT == 3 and self.opt.get("rotA", 1)
        kslot = (lambda n: 2 * (n & 1)) if NQT == 3 else (lambda n: n & 1)
        vslot = (lambda n: 1 + 2 * (n & 1)) if NQT == 3 else (lambda n: 2 + (n & 1))
        soff = lambda n: sOFFB if n & 1 else sOFFA
        a("s_mov_b32 s%d, 0xff800000" % sTHR); a("s_mov_b32 s%d, 0xff800000" % sFLOOR); a("s_mov_b32 s%d, 0" % sIT)
        self.wvm("K0")
        for f in self.kreads(kslot(0), "k"): f()
        self.wlg0()
        m = self.qk(0, 0)
        if NQT == 2:
            self.kv_off_next(soff(0), rot)
            d = self.dma_group(SRD_K, vKD, soff(0), 4 * G, kslot(0) * 8192, "K0", self.nt)
            for k in range(8): a(m[k]); d[k]()
        else:
            for k in range(8): a(m[k])
        for s, _ in self.maxtree(0): a(s)
        self.ts(3 if NQT == 3 else 5)
        vm0 = list(self.vm); lg0 = list(self.lg)
        a(".p2align 3")
        a("%s_loop:" % name)
        for nb in range(2):
            for T in range(NQT):
                i = nb * NQT + T
                Tn, Tp = (T + 1) % NQT, (T - 1) % NQT
                mf = self.qk(Tn, (i + 1) & 1) + self.pv(Tp, (i - 1) & 1)
                pre = [[] for _ in range(16)]
                gap = [[] for _ in range(16)]
                par = lambda n: n & 1
                if T == NQT - 1:
                    pre[0].append(lambda: self.wlg("k_3")); pre[4].append(lambda: self.wlg("k_7"))
                if T == NQT - 2:
                    gap[7].append((lambda nb=nb: self.wvm("K%d" % par(nb + 1)), 4))
                    for s, f in enumerate(self.kreads(kslot(nb + 1), "k")): gap[8 + s].append((f, 5))
                if T == 1:
                    pre[0].insert(0, lambda nb=nb: self.wvm("V%d" % par(nb)))
                    for s, f in enumerate(self.vreads(vslot(nb), "v")): gap[s // 2].append((f, 5))
                    pre[8].append(lambda: self.wlg("v_3")); pre[12].append(lambda: self.wlg("v_7"))
                if NQT == 3:
                    if T == 2:
                        d = self.dma_group(SRD_V, vVD, soff(nb), 4 * G, vslot(nb) * 8192, "V%d" % par(nb), self.nt)
                        for s, f in enumerate(d): gap[2 * s].append((f, 8 if s & 3 else 14))
                    if T == 0:
                        d = self.dma_group(SRD_K, vKD, soff(nb), 4 * G, kslot(nb) * 8192, "K%d" % par(nb), self.nt)
                        gap[0].append((lambda nb=nb: self.kv_off_next(soff(nb), rot), 20))
                        for s, f in enumerate(d): gap[2 * s + 1].append((f, 8 if s & 3 else 14))
                else:
                    if T == 0:
                        d = self.dma_group(SRD_V, vVD, soff(nb + 1), 4 * G, vslot(nb + 1) * 8192, "V%d" % par(nb + 1), self.nt)
                        for s, f in enumerate(d): gap[s].insert(0, (f, 8 if s & 3 else 14))
                    if T == 1:
                        d = self.dma_group(SRD_K, vKD, soff(nb + 1), 4 * G, kslot(nb + 1) * 8192, "K%d" % par(nb + 1), self.nt)
                        gap[8].append((lambda nb=nb: self.kv_off_next(soff(nb + 1), rot), 8))
                        for s, f in enumerate(d): gap[8 + s].append((f, 8 if s & 3 else 14))
                if nb == 0 and T == NQT - 1:
                    gap[6].append((lambda: (a("s_mov_b32 s%d, 0x41000000" % sTHR), a("s_mov_b32 s%d, 0" % sFLOOR)), 9))
                if nb == 1 and T == NQT - 1:
                    gap[14].append((lambda: (a("s_add_u32 s%d, s%d, 1" % (sIT, sIT)), a("s_cmp_lt_u32 s%d, 8" % sIT)), 8))
                sm = self.smax(T, i & 1); mt = self.maxtree((i + 1) & 1)
                fixed = [sum(c for _, c in g) for g in gap]
                fixed[0] += 4
                total = sum(fixed) + sum(c for _, c in sm) + sum(c for _, c in mt)
                cum = 0
                lbl = "%s_rare%d" % (name, i); ret = "%s_ret%d" % (name, i)
                self.rare.append((lbl, ret, T, i & 1))
                for m in range(16):
                    for f in pre[m]: f()
                    a(mf[m])
                    if m == 0:
                        a("s_cbranch_vccnz %s" % lbl); a(ret + ":")
                    for f, c in gap[m]: f()
                    cum += fixed[m]
                    target = total * (m + 1) / 16.0
                    while True:
                        src = sm if sm else (mt if m >= 11 else None)
                        if m >= 11 and mt and sm and (len(mt) > 2 * (15 - m)): src = mt
                        if not src: break
                        if m < 15 and cum + src[0][1] / 2.0 > target: break
                        s, c = src.pop(0); a(s); cum += c
                assert not sm and not mt
        a("s_cbranch_scc1 %s_loop" % name)
        assert self.vm == vm0, (self.vm, vm0)
        assert self.lg == lg0, (self.lg, lg0)
        for m in self.pv(NQT - 1, 1): a(m)

    def attn_epilogue(self, NQT, sc):
        a = self.a
        tW, tR, tM = vT2, vT2 + 1, vT2 + 4
        a("v_lshlrev_b32 v%d, 4, v%d" % (vT, vL)); a("v_lshlrev_b32 v%d, 3, v%d" % (vT + 1, vL))
        a("v_add_u32 v%d, s%d, v%d" % (tW, sREG, vT)); a("v_add_u32 v%d, s%d, v%d" % (tM, sREG, vT + 1))
        for p in (1, 2, 3):
            a("s_sub_u32 s%d, s%d, %d" % (sT0, sW, p)); a("s_and_b32 s%d, s%d, 3" % (sT0, sT0)); a("s_mul_i32 s%d, s%d, %d" % (sT0, sT0, REGION))
            a("v_add_u32 v%d, s%d, v%d" % (tR + p - 1, sT0, vT)); a("v_add_u32 v%d, s%d, v%d" % (tM + p, sT0, vT + 1))
        for T in range(NQT):
            a("v_mov_b32 v%d, v%d" % (vT, vLS + T))
            a("v_permlane32_swap_b32 v%d, v%d" % (vT, vLS + T))
            a("v_add_f32 v%d, v%d, v%d" % (vC + 16 * T + 1, vT, vLS + T))
        self.wvm0()
        for T in range(NQT): self.lgop("ds_write_b64 v%d, %s offset:%d" % (tM, vr(vC + 16 * T, 2), 36864 + T * 512), "w")
        for T in range(NQT):
            for p in (1, 2, 3):
                for q in range(4):
                    self.lgop("ds_write_b128 v%d, %s offset:%d" % (tW, ar(T * 64 + p * 16 + 4 * q, 4), ((p - 1) * NQT + T) * 4096 + q * 1024), "w")
        tO = vT2 + 8
        a("v_bfe_u32 v%d, v%d, 4, 1" % (vT, vL)); a("v_lshlrev_b32 v%d, 12, v%d" % (vT, vT))
        a("v_lshrrev_b32 v%d, 5, v%d" % (vT + 1, vL)); a("v_lshl_add_u32 v%d, v%d, 8, v%d" % (vT, vT + 1, vT))
        a("v_and_b32 v%d, 15, v%d" % (vT + 1, vL)); a("v_lshl_add_u32 v%d, v%d, 4, v%d" % (vT, vT + 1, vT))
        a("s_lshl_b32 s%d, s%d, 10" % (sT0, sW)); a("v_add_u32 v%d, s%d, v%d" % (tO, sT0, vT))
        own = vQ2
        self.wlg0(); a("s_barrier")
        for T in range(NQT):
            for p in (1, 2, 3): self.lgop("ds_read_b64 %s, v%d offset:%d" % (vr(vC + 16 * T + 2 * p, 2), tM + p, 36864 + T * 512), "ml")
        Rb = [vK, vK + 48]
        def rd(T):
            for q in range(4):
                for p in (1, 2, 3):
                    self.lgop("ds_read_b128 %s, v%d offset:%d" % (vr(Rb[T & 1] + (p - 1) * 16 + 4 * q, 4), tR + p - 1, ((p - 1) * NQT + T) * 4096 + q * 1024), "r%d_%d" % (T, q))
        rd(0)
        self.wlg("ml")
        for T in range(NQT):
            c = vC + 16 * T
            a("v_min3_f32 v%d, v%d, v%d, v%d" % (vT, c, c + 2, c + 4)); a("v_min_f32 v%d, v%d, v%d" % (vT, vT, c + 6))
            for p in range(4): a("v_sub_f32 v%d, v%d, v%d" % (c + 2 * p, vT, c + 2 * p))
            for p in range(4): a("v_exp_f32 v%d, v%d" % (c + 2 * p, c + 2 * p))
            a("v_mul_f32 v%d, v%d, v%d" % (vT, c, c + 1))
            for p in (1, 2, 3): a("v_fmac_f32 v%d, v%d, v%d" % (vT, c + 2 * p, c + 2 * p + 1))
            a("v_rcp_f32 v%d, v%d" % (vT, vT))
            for p in range(4): a("v_mul_f32 v%d, v%d, v%d" % (c + 2 * p, c + 2 * p, vT))
        for T in range(NQT):
            c = vC + 16 * T; o = own + 16 * (T & 1)
            for r in range(16): a("v_accvgpr_read_b32 v%d, a%d" % (o + r, T * 64 + r))
            for r in range(16): a("v_mul_f32 v%d, v%d, v%d" % (o + r, o + r, c))
            for q in range(4):
                self.wlg("r%d_%d" % (T, q))
                if q == 1 and T + 1 < NQT: rd(T + 1)
                for p in (1, 2, 3):
                    for r in range(4): a("v_fmac_f32 v%d, v%d, v%d" % (o + 4 * q + r, Rb[T & 1] + (p - 1) * 16 + 4 * q + r, c + 2 * p))
            pk = vP + 8 * (T & 1)
            for r in range(8): a("v_cvt_pk_bf16_f32 v%d, v%d, v%d" % (pk + r, o + 2 * r, o + 2 * r + 1))
            a("s_mov_b32 s%d, %d" % (sT0, T * 8192))
            for h2 in range(2):
                self.vmop("buffer_store_dwordx4 %s, v%d, %s, s%d offen offset:%d%s" % (vr(pk + 4 * h2, 4), tO, srd(SRD_O), sT0, h2 * 512, sc), "ost")

    def setup_A(self):
        a = self.a
        a("s_and_b32 s%d, s%d, 3" % (sT0, sJ)); a("s_lshl_b32 s%d, s%d, 1" % (sROT, sT0))
        a("s_and_b32 s%d, s%d, 4" % (sB, sXCD)); a("s_add_u32 s%d, s%d, s%d" % (sB, sB, sT0))
        a("s_bfe_u32 s%d, s%d, 0x20002" % (sROT2, sJ))
        a("s_and_b32 s%d, s%d, 3" % (sT1, sXCD))
        a("s_lshl_b32 s%d, s%d, 3" % (sH, sT1)); a("s_lshl1_add_u32 s%d, s%d, s%d" % (sH, sROT2, sH))
        a("s_mul_i32 s%d, s%d, 98304" % (sT0, sB)); self.mksrd(SRD_X, sPX_A, sT0, 98304)
        a("s_lshl_b32 s%d, s%d, 8" % (sT0, sH)); self.mksrd(SRD_W, sPWQ_A, sT0, (8388608,))
        a("s_lshl2_add_u32 s%d, s%d, s%d" % (sT0, sB, sT1)); a("s_lshl_b32 s%d, s%d, 19" % (sT0, sT0))
        self.mksrd(SRD_K, sPK_A, sT0, 524288); self.mksrd(SRD_V, sPV_A, sT0, 524288)
        a("s_lshl_b32 s%d, s%d, 5" % (sT0, sB)); a("s_add_u32 s%d, s%d, s%d" % (sT0, sT0, sH)); a("s_mul_i32 s%d, s%d, 12288" % (sT0, sT0))
        self.mksrd(SRD_O, sPWS, sT0, 24576)
        if not self.opt.get("rotW", 1): a("s_mov_b32 s%d, 0" % sROT)
    def setup_B(self):
        a = self.a
        a("s_and_b32 s%d, s%d, 7" % (sB, sJ)); a("s_mov_b32 s%d, s%d" % (sROT, sB))
        a("s_lshr_b32 s%d, s%d, 3" % (sT0, sJ)); a("s_lshl2_add_u32 s%d, s%d, s%d" % (sH, sXCD, sT0))
        a("s_mul_i32 s%d, s%d, 98304" % (sT0, sB)); self.mksrd(SRD_X, sPX_B, sT0, 98304)
        a("s_lshl_b32 s%d, s%d, 8" % (sT0, sH)); self.mksrd(SRD_W, sPWQ_B, sT0, (8388608,))
        a("s_lshl_b32 s%d, s%d, 5" % (sT1, sB)); a("s_add_u32 s%d, s%d, s%d" % (sT1, sT1, sH)); a("s_lshl_b32 s%d, s%d, 19" % (sT0, sT1))
        self.mksrd(SRD_K, sPK_B, sT0, 524288); self.mksrd(SRD_V, sPV_B, sT0, 524288)
        a("s_mul_i32 s%d, s%d, 12288" % (sT0, sT1)); a("s_add_u32 s%d, s%d, %d" % (sT0, sT0, O_PART))
        self.mksrd(SRD_O, sPWS, sT0, 12288)
        if not self.opt.get("rotW", 1): a("s_mov_b32 s%d, 0" % sROT)

    def oproj_addrs(self):
        a = self.a
        t0, t1, t2, t3 = vT, vT + 1, vT + 2, vT + 3
        a("v_lshrrev_b32 v%d, 3, v%d" % (t0, vL)); a("v_and_b32 v%d, 7, v%d" % (t1, vL))
        a("v_and_b32 v%d, 6, v%d" % (t2, t0)); a("v_xor_b32 v%d, v%d, v%d" % (t2, t2, t1))
        a("v_lshlrev_b32 v%d, 4, v%d" % (t2, t2)); a("v_lshl_add_u32 v%d, v%d, 11, v%d" % (t2, t0, t2))
        for j in range(4): a("v_add_u32 v%d, %d, v%d" % (2 + j, j * (8 * 2048 - 1024), t2))
        a("v_lshlrev_b32 v%d, 4, v%d" % (10, vL))
        a("v_lshrrev_b32 v%d, 5, v%d" % (t0, vL)); a("v_lshlrev_b32 v%d, 4, v%d" % (t0, t0))
        a("v_bfe_u32 v%d, v%d, 2, 3" % (t1, vL))
        a("v_add_u32 v%d, v%d, v%d" % (t0, t0, t1)); a("v_lshlrev_b32 v%d, 7, v%d" % (t0, t0))
        a("v_and_b32 v%d, 3, v%d" % (t2, vL)); a("v_lshl_add_u32 v%d, v%d, 3, v%d" % (t0, t2, t0))
        a("v_add_u32 v%d, s%d, v%d" % (t0, sREG, t0))
        a("v_lshrrev_b32 v%d, 1, v%d" % (t1, t1))
        for d in range(4):
            a("s_add_u32 s%d, s%d, %d" % (sT1, sW, d)); a("s_and_b32 s%d, s%d, 3" % (sT1, sT1))
            a("v_xor_b32 v%d, s%d, v%d" % (t2, sT1, t1)); a("v_lshl_add_u32 v%d, v%d, 5, v%d" % (6 + d, t2, t0))
    def oproj_simple(self, sc):
        a = self.a
        def issue(i):
            its = []
            def first():
                a("s_add_u32 s%d, s%d, %d" % (sT0, sROT, i)); a("s_and_b32 s%d, s%d, 7" % (sT0, sT0)); a("s_lshl3_add_u32 s%d, s%d, s%d" % (sT0, sW, sT0))
                a("s_lshl_b32 s%d, s%d, 18" % (sT2, sT0)); a("s_mul_i32 s%d, s%d, 12288" % (sT1, sT0))
            its.append(first)
            its += self.dma_group(SRD_W, 2, sT2, 32 * 2048, (i & 1) * 16384, "h%d" % i, self.nt, n=16)
            for qt in range(3):
                for s in range(4):
                    def f(qt=qt, s=s):
                        if s == 0 and qt: a("s_add_u32 s%d, s%d, 4096" % (sT1, sT1))
                        self.vmop("buffer_load_dwordx4 %s, v10, %s, s%d offen offset:%d%s" % (vr(64 + 48 * (i & 1) + (qt * 4 + s) * 4, 4), srd(SRD_O), sT1, s * 1024, sc), "h%d" % i)
                    its.append(f)
            return its
        for i in (0, 1):
            for f in issue(i): f()
        for i in range(8):
            self.wvm("h%d" % i)
            def rd(s):
                for d in range(4):
                    for u in range(2):
                        self.lgop("ds_read_b64_tr_b16 %s, v%d offset:%d" % (vr(32 + 16 * (s & 1) + 4 * d + 2 * u, 2), 6 + d, (i & 1) * 16384 + s * 4096 + u * 1024), "f%d" % s)
            rd(0)
            for s in range(4):
                if s < 3: rd(s + 1)
                self.wlg("f%d" % s)
                for d in range(4):
                    for qt in range(3):
                        acc = ar((d * 3 + qt) * 4, 4)
                        a("v_mfma_f32_16x16x32_bf16 %s, %s, %s, %s" % (acc, vr(32 + 16 * (s & 1) + 4 * d, 4), vr(64 + 48 * (i & 1) + (qt * 4 + s) * 4, 4), acc if (i or s) else "0"))
            if i + 2 < 8:
                for f in issue(i + 2): f()
    def oproj_finish(self):
        a = self.a
        tW, tR, tO = vT2, vT2 + 1, vT2 + 4
        a("v_add_u32 v%d, s%d, v10" % (tW, sREG))
        for p in (1, 2, 3):
            a("s_sub_u32 s%d, s%d, %d" % (sT0, sW, p)); a("s_and_b32 s%d, s%d, 3" % (sT0, sT0)); a("s_mul_i32 s%d, s%d, %d" % (sT0, sT0, REGION))
            a("v_add_u32 v%d, s%d, v10" % (tR + p - 1, sT0))
        a("v_and_b32 v%d, 15, v%d" % (vT, vL)); a("v_lshlrev_b32 v%d, 12, v%d" % (vT, vT))
        a("v_lshrrev_b32 v%d, 4, v%d" % (vT + 1, vL)); a("v_lshl_add_u32 v%d, v%d, 3, v%d" % (vT, vT + 1, vT))
        a("s_lshl_b32 s%d, s%d, 5" % (sT0, sW)); a("v_add_u32 v%d, s%d, v%d" % (tO, sT0, vT))
        for p in (1, 2, 3):
            for qt in range(3): self.lgop("ds_write_b128 v%d, %s offset:%d" % (tW, ar((p * 3 + qt) * 4, 4), ((p - 1) * 3 + qt) * 1024), "w")
        o = 32
        for r in range(12): a("v_accvgpr_read_b32 v%d, a%d" % (o + r, r))
        self.wlg0(); a("s_barrier")
        for qt in range(3):
            for p in (1, 2, 3): self.lgop("ds_read_b128 %s, v%d offset:%d" % (vr(64 + (qt * 3 + p - 1) * 4, 4), tR + p - 1, ((p - 1) * 3 + qt) * 1024), "r%d" % qt)
        for qt in range(3):
            self.wlg("r%d" % qt)
            for p in range(3):
                for h2 in range(2): a("v_pk_add_f32 %s, %s, %s" % (vr(o + 4 * qt + 2 * h2, 2), vr(o + 4 * qt + 2 * h2, 2), vr(64 + (qt * 3 + p) * 4 + 2 * h2, 2)))
            for h2 in range(2): a("v_cvt_pk_bf16_f32 v%d, v%d, v%d" % (o + 4 * qt + h2, o + 4 * qt + 2 * h2, o + 4 * qt + 2 * h2 + 1))
            a("s_mov_b32 s%d, %d" % (sT0, qt * 65536))
            self.vmop("buffer_store_dwordx2 %s, v%d, %s, s%d offen" % (vr(o + 4 * qt, 2), tO, srd(SRD_OUT), sT0), "st")
    def setup_O(self, part_sreg):
        a = self.a
        a("s_cmp_eq_u32 s%d, 0" % part_sreg)
        a("s_cselect_b32 s%d, s%d, s%d" % (sT2, sPWO_A, sPWO_B)); a("s_cselect_b32 s%d, s%d, s%d" % (sT3, sPWO_A + 1, sPWO_B + 1))
        a("s_lshl_b32 s%d, s%d, 7" % (sT0, sNB)); self.mksrd(SRD_W, sT2, sT0, (8388608,))
        a("s_mul_i32 s%d, s%d, %d" % (sT0, sB, 32 * 12288)); a("s_mul_i32 s%d, s%d, %d" % (sT1, part_sreg, O_PART)); a("s_add_u32 s%d, s%d, s%d" % (sT0, sT0, sT1))
        self.mksrd(SRD_O, sPWS, sT0, 32 * 12288)
        a("s_mul_i32 s%d, s%d, %d" % (sT0, sB, 48 * 4096)); a("s_lshl_b32 s%d, s%d, 11" % (sT1, part_sreg)); a("s_add_u32 s%d, s%d, s%d" % (sT0, sT0, sT1))
        a("s_lshl_b32 s%d, s%d, 7" % (sT1, sNB)); a("s_add_u32 s%d, s%d, s%d" % (sT0, sT0, sT1))
        self.mksrd(SRD_OUT, sPOUT, sT0, (8 * 48 * 4096,))

def build_2k(opt):
    g = Gen(opt); a = g.a
    k1, k2 = "attn_kernel", "oproj_kernel"
    kernel_begin(a, k1)
    g.entry("K1_end")
    g.qproj_addrs(); g.attn_addrs()
    a("s_waitcnt lgkmcnt(0)")
    a("s_cmp_lt_u32 s%d, 16" % sJ); a("s_cbranch_scc1 K1_B")
    g.setup_A(); g.qproj(2, 3); g.ts(2); g.attn(3, "A"); g.attn_epilogue(3, "")
    g.ts(4)
    g.wlg0(); a("s_barrier")
    g.vm = [];
    a("K1_B:")
    g.setup_B(); g.qproj(1, 2); g.attn(2, "B"); g.ts(6); g.attn_epilogue(2, "")
    g.wvm0()
    g.ts_store(0)
    a("K1_end:"); a("s_endpgm")
    g.flush_rare()
    kernel_begin(a, k2)
    g.vm = []; g.lg = []
    g.entry("K2_end")
    g.oproj_addrs()
    a("s_lshr_b32 s%d, s%d, 4" % (sPART, sJ)); a("s_and_b32 s%d, s%d, 7" % (sB, sJ))
    a("s_bfe_u32 s%d, s%d, 0x10003" % (sT0, sJ)); a("s_lshl1_add_u32 s%d, s%d, s%d" % (sNB, sXCD, sT0))
    a("s_lshl2_add_u32 s%d, s%d, s%d" % (sROT, sT0, sB))
    a("s_waitcnt lgkmcnt(0)")
    g.setup_O(sPART)
    g.oproj_simple(""); g.ts(2); g.oproj_finish()
    g.wvm0()
    g.ts_store(1024)
    a("K2_end:"); a("s_endpgm")
    lines = hazard.fix(a.lines, verbose=opt.get("v"))
    return file_text([(k1, (256, 1, 1), (256, 1, 1), 163840), (k2, (256, 1, 1), (256, 1, 1), 163840)], "\n".join(lines) + "\n",
                     [kernel_desc(k1, 512, 256), kernel_desc(k2, 512, 256)])

if __name__ == "__main__":
    out = sys.argv[1]
    opt = {}
    for kv in sys.argv[2:]:
        k, v = kv.split("="); opt[k] = int(v)
    open(out, "w").write(build_2k(opt))
```
